```python
import torch

def _softmax(x, axis=-1):
    return torch.softmax(x, dim=axis)
def _gelu(x):
    return torch.nn.functional.gelu(x, approximate="tanh")
def _silu(x):
    return torch.nn.functional.silu(x)
def _sigmoid(x):
    return torch.sigmoid(x)
def _layernorm(x, axis=-1, eps=1e-5):
    m = x.mean(dim=axis, keepdim=True)
    v = x.var(dim=axis, keepdim=True, unbiased=False)
    return (x - m) / torch.sqrt(v + eps)
def _scatter_add(tgt, idx, src, axis=0):
    return tgt.clone().index_add_(axis, idx, src)
def _segment_sum(src, seg, n):
    out = torch.zeros((n,) + src.shape[1:], dtype=src.dtype)
    return out.index_add_(0, seg, src)
def _pad(x, pw):
    flat = tuple(v for pair in reversed(pw) for v in pair)
    return torch.nn.functional.pad(x, flat)

kernel_name = 'concat_heads__spectral_fnet__grouped_kv_mqa__prompt'

def setup_inputs():

    _w = (lambda a: (lambda t: t.to(torch.bfloat16) if t.is_floating_point() else t)(torch.as_tensor(a)))
    def _A_setup():
        B, S, D = 1, 2048, 1024
        ns = torch.arange(S)[:, None] * torch.arange(S)[None, :]
        nd = torch.arange(D)[:, None] * torch.arange(D)[None, :]
        Ws_re = torch.cos(-2.0 * torch.pi * ns / S).to(float)
        Ws_im = torch.sin(-2.0 * torch.pi * ns / S).to(float)
        Wd_re = torch.cos(-2.0 * torch.pi * nd / D).to(float)
        Wd_im = torch.sin(-2.0 * torch.pi * nd / D).to(float)
        return {
            "x": _w((lambda *s: torch.randn(*s, dtype=torch.bfloat16) * 0.05)(B, S, D)),
            "dft_seq_re": _w(Ws_re),
            "dft_seq_im": _w(Ws_im),
            "dft_hid_re": _w(Wd_re),
            "dft_hid_im": _w(Wd_im),
        }
    _A_in = _A_setup()

    def _B_setup():
        B, S, D, H = 1, 2048, 1024, 32
        Dh = D // H
        return {
            "x": _w((lambda *s: torch.randn(*s, dtype=torch.bfloat16) * 0.05)(B, S, D)),
            "wq": _w((lambda *s: torch.randn(*s, dtype=torch.bfloat16) * 3.2)(D, H * Dh)),
            "wk": _w((lambda *s: torch.randn(*s, dtype=torch.bfloat16) * 3.2)(D, Dh)),
            "wv": _w((lambda *s: torch.randn(*s, dtype=torch.bfloat16) * 0.4)(D, Dh)),
            "wo": _w((lambda *s: torch.randn(*s, dtype=torch.bfloat16) * 0.4)(H * Dh, D)),
        }
    _B_in = _B_setup()

    return {
        "A_x": _A_in["x"],
        "A_dft_seq_re": _A_in["dft_seq_re"],
        "A_dft_seq_im": _A_in["dft_seq_im"],
        "A_dft_hid_re": _A_in["dft_hid_re"],
        "A_dft_hid_im": _A_in["dft_hid_im"],
        "B_x": _B_in["x"],
        "B_wq": _B_in["wq"],
        "B_wk": _B_in["wk"],
        "B_wv": _B_in["wv"],
        "B_wo": _B_in["wo"],
    }

def reference(A_x, A_dft_seq_re, A_dft_seq_im, A_dft_hid_re, A_dft_hid_im, B_x, B_wq, B_wk, B_wv, B_wo):
    def _A_ref(x, dft_seq_re, dft_seq_im, dft_hid_re, dft_hid_im):
        a = torch.einsum("bsd,ed->bse", x, dft_hid_re)
        b = torch.einsum("bsd,ed->bse", x, dft_hid_im)
        y = torch.einsum("ts,bse->bte", dft_seq_re, a) - torch.einsum("ts,bse->bte", dft_seq_im, b)
        return y

    def _B_ref(x, wq, wk, wv, wo):
        B, S, D = x.shape
        H = 32
        Dh = D // H
        q = (lambda x, *d: x.permute(*d))((x @ wq).reshape(B, S, H, Dh), 0, 2, 1, 3)
        k = x @ wk
        v = x @ wv
        scores = torch.einsum("bhqd,bkd->bhqk", q, k) * (Dh ** -0.5)
        p = _softmax(scores, axis=-1)
        o = torch.einsum("bhqk,bkd->bhqd", p, v)
        return (lambda x, *d: x.permute(*d))(o, 0, 2, 1, 3).reshape(B, S, H * Dh) @ wo

    a = _A_ref(A_x, A_dft_seq_re, A_dft_seq_im, A_dft_hid_re, A_dft_hid_im)
    b = _B_ref(B_x, B_wq, B_wk, B_wv, B_wo)
    return torch.concatenate([a, b], axis=-1)
```

```python
import re

TRANS = ('v_exp_f32','v_log_f32','v_rcp_f32','v_rsq_f32','v_sqrt_f32','v_sin_f32','v_cos_f32','v_rcp_iflag_f32','v_exp_f16')

def regs_of(tok):
    tok = tok.strip()
    tok = tok.lstrip('-')
    m = re.fullmatch(r'abs\((.*)\)', tok)
    if m: tok = m.group(1)
    tok = tok.strip('|')
    m = re.fullmatch(r'([vas])(\d+)', tok)
    if m: return {(m.group(1), int(m.group(2)))}
    m = re.fullmatch(r'([vas])\[(\d+):(\d+)\]', tok)
    if m: return {(m.group(1), i) for i in range(int(m.group(2)), int(m.group(3))+1)}
    if tok == 'vcc': return {('s',106),('s',107)}
    if tok == 'vcc_lo': return {('s',106)}
    if tok == 'vcc_hi': return {('s',107)}
    if tok == 'exec': return {('s',126),('s',127)}
    if tok == 'm0': return {('s',124)}
    return set()

class I:
    __slots__=('text','op','ops','d','s','cls','passes','A','B','C','label','target','states','data','auto')
    def __init__(self, text):
        self.text=text; self.label=None; self.target=None; self.auto=False
        t=text.split(';')[0].strip()
        self.d=set(); self.s=set(); self.cls=None; self.passes=0
        self.A=self.B=self.C=set(); self.data=set(); self.states=1
        if t.endswith(':'):
            self.label=t[:-1]; self.op=None; self.cls='label'; self.states=0; return
        if t.startswith('.') or not t:
            self.op=None; self.cls='dir'; self.states=0; return
        parts=t.split(None,1); op=parts[0]; self.op=op
        rest=parts[1] if len(parts)>1 else ''
        ops=[x.strip() for x in re.split(r',(?![^\[]*\])', rest)] if rest else []
        mods=''
        if ops:
            sp=ops[-1].split(None,1)
            ops[-1]=sp[0]
            if len(sp)>1: mods=sp[1]
        self.ops=ops
        R=[regs_of(o) for o in ops]
        base=re.sub(r'_(e32|e64|sdwa|dpp)$','',op)
        if op.startswith('v_mfma'):
            self.cls='mfma'; self.d=R[0]; self.A=R[1]; self.B=R[2]; self.C=R[3]; self.s=R[1]|R[2]|R[3]
            self.passes = 8 if '32x32' in op else 4
        elif op.startswith('v_smfmac'):
            self.cls='mfma'; self.d=R[0]; self.A=R[1]; self.B=R[2]|R[3]; self.C=R[0]; self.s=R[0]|R[1]|R[2]|R[3]
            self.passes = 8 if '32x32' in op else 4
        elif op.startswith('v_'):
            self.cls='valu'
            if base.startswith('v_cmp'):
                self.d=R[0]; self.s=set().union(*R[1:])
            elif base in ('v_add_co_u32','v_sub_co_u32','v_subrev_co_u32'):
                self.d=R[0]|R[1]; self.s=set().union(*R[2:])
            elif base in ('v_addc_co_u32','v_subb_co_u32'):
                self.d=R[0]|R[1]; self.s=set().union(*R[2:])
            elif base.startswith('v_permlane') and 'swap' in base:
                self.d=R[0]|R[1]; self.s=R[0]|R[1]
            elif base in ('v_fmac_f32','v_pk_fmac_f16','v_dot2c_f32_bf16','v_writelane_b32'):
                self.d=R[0]; self.s=set().union(*R)
            elif base=='v_nop':
                pass
            else:
                self.d=R[0]; self.s=set().union(*R[1:]) if len(R)>1 else set()
                if base=='v_cndmask_b32' and len(ops)==3: self.s|=regs_of('vcc')
            if 'dst_unused:UNUSED_PRESERVE' in mods: self.s|=R[0]
            if 'dpp' in op or 'row_' in mods or 'quad_perm' in mods: self.cls='valu'; self.op=op+'#dpp'
        elif op.startswith('ds_'):
            self.cls='ds'
            if op.startswith('ds_read') or op.startswith('ds_bpermute') or op.startswith('ds_permute') or op.startswith('ds_swizzle'):
                self.d=R[0]; self.s=set().union(*R[1:])
            else:
                self.s=set().union(*R)
        elif op.startswith('buffer_') or op.startswith('global_') :
            self.cls='vmem'
            lds = (' lds' in (' '+mods)) or ('_lds_' in op)
            if op.startswith('buffer_wb') or op.startswith('buffer_inv'):
                pass
            elif lds:
                self.cls='vmemlds'; self.s=set().union(*R)|regs_of('m0')
            elif 'load' in op:
                self.d=R[0]; self.s=set().union(*R[1:])
            elif 'atomic' in op:
                self.s=set().union(*R)
                if 'sc0' in mods: self.d=R[0]
            else:
                self.s=set().union(*R)
                if op.endswith('x4') or op.endswith('x3'):
                    self.data = R[0] if op.startswith('buffer_') else R[1]
        elif op.startswith('s_'):
            self.cls='salu'
            if op=='s_nop': self.states=int(ops[0],0)+1
            elif op.startswith('s_cbranch') or op=='s_branch':
                self.target=ops[0]
            elif op.startswith('s_cmp') or op in('s_waitcnt','s_barrier','s_endpgm','s_sleep','s_setprio','s_bitcmp1_b32','s_bitcmp0_b32'):
                self.s=set().union(*R) if R else set()
            elif op.startswith('s_load') or op.startswith('s_memtime') or op.startswith('s_memrealtime') or op.startswith('s_buffer_load'):
                self.cls='smem'; self.d=R[0]; self.s=set().union(*R[1:]) if len(R)>1 else set()
            else:
                self.d=R[0] if R else set(); self.s=set().union(*R[1:]) if len(R)>1 else set()
                if 'saveexec' in op: self.d=self.d|regs_of('exec')
        else:
            raise ValueError('unknown op '+text)

def isv(rs): return {r for r in rs if r[0] in 'va'}
def iss(rs): return {r for r in rs if r[0]=='s'}

def need(p, c):
    n=0
    if p.cls=='valu':
        vd=isv(p.d); sd=iss(p.d)
        if vd:
            if c.cls=='mfma' and vd & c.s: n=max(n,2)
            if c.cls=='valu':
                b=c.op or ''
                if (b.startswith('v_readfirstlane') or b.startswith('v_readlane')) and vd & c.s: n=max(n,1)
                if b.startswith('v_permlane') and vd & c.s: n=max(n,2)
                if b.endswith('#dpp') and vd & c.s: n=max(n,2)
                pb=re.sub(r'_(e32|e64|sdwa|dpp)$','',p.op.replace('#dpp',''))
                if pb in TRANS and vd & c.s: n=max(n,1)
                if 'sdwa' in p.op and vd & (c.s|c.d): n=max(n,1)
        if sd:
            if c.cls in('vmem','vmemlds') and sd & c.s: n=max(n,5)
            if c.cls=='valu' and sd & c.s:
                n=max(n, 4 if (c.op.startswith('v_readlane') or c.op.startswith('v_writelane')) else 2)
            if c.cls in ('salu','smem') and sd & c.s: n=max(n,1)
    if p.cls=='mfma':
        P=p.passes
        if c.cls=='mfma':
            if p.d & (c.A|c.B): n=max(n,{4:8,8:12}[P])
            if p.d & c.C:
                if not (p.d==c.C and c.passes==P): n=max(n,{4:6,8:10}[P])
            elif p.d & c.d:
                n=max(n,{4:6,8:10}[P])
        elif c.cls in('valu','ds','vmem','vmemlds'):
            if p.d & (c.s|c.d): n=max(n,{4:8,8:12}[P])
            if p.C & c.d and c.cls=='valu': n=max(n,{4:3,8:7}[P])
    if p.cls=='salu' and ('s',124) in p.d and c.cls=='vmemlds': n=max(n,1)
    if p.data and c.cls in('valu','mfma','ds','vmem') and p.data & c.d: n=max(n,2)
    return n

class Asm:
    def __init__(self): self.ins=[]
    def __call__(self, text):
        for line in text.split('\n'):
            t=line.strip()
            if not t or t.startswith(';'): continue
            self.ins.append(I(t))
    def label(self,n): self.ins.append(I(n+':'))
    def fix(self, verbose=True, name=''):
        total=0
        for _ in range(2000):
            ins=self.ins
            lab={x.label:i for i,x in enumerate(ins) if x.label}
            def succ(i):
                x=ins[i]
                if x.op=='s_endpgm': return []
                if x.op=='s_branch': return [lab[x.target]]
                r=[i+1] if i+1<len(ins) else []
                if x.target: r.append(lab[x.target])
                return r
            add={}
            for i,p in enumerate(ins):
                if p.cls not in('valu','mfma','salu','vmem'): continue
                if p.cls=='salu' and ('s',124) not in p.d: continue
                if p.cls=='vmem' and not p.data: continue
                maxd = 12 if p.cls=='mfma' else 5
                stack=[(j,0) for j in succ(i)]; seen={}
                while stack:
                    j,dist=stack.pop()
                    if dist>=maxd or seen.get(j,99)<=dist: continue
                    seen[j]=dist
                    c=ins[j]
                    if c.op:
                        n=need(p,c)
                        if n>dist: add[j]=max(add.get(j,(0,None))[0], n-dist),p
                    for k in succ(j): stack.append((k,dist+c.states))
            if not add: break
            j=min(add); out=[]
            last=-100
            for idx,x in enumerate(ins):
                if idx in add and idx-last>14:
                    n,p=add[idx]
                    nop=I(f's_nop {n-1}'); nop.auto=True; out.append(nop); last=idx; total+=n
                    if verbose: print(f'[{name}] nop {n} before "{x.text}" (after "{p.text}")')
                out.append(x)
            self.ins=out
        else:
            raise RuntimeError('hazard fix did not converge')
        return total
    def text(self):
        o=[]
        for x in self.ins:
            if x.cls=='label': o.append(x.text)
            else: o.append('    '+x.text)
        return '\n'.join(o)+'\n'
```

```python
import sys
sys.path.insert(0,'gen')
from asmlib import Asm

NAME='concat_heads__spectral_fnet__grouped_kv_mqa__prompt'
KA=dict(ax=0,sre=8,sim=16,hre=24,him=32,bx=40,wq=48,wk=56,wv=64,wo=72,out=80,dbg=88,ws=96)
WS_KV=0; WS_Q=1<<20; WS_O=6<<20; WS_G=10<<20
SLOT=24576
QSCALE=0x3e8293ee
import struct, math
def f2u(x): return struct.unpack('<I',struct.pack('<f',x))[0]
QSCALE=f2u(math.log2(math.e)/math.sqrt(32))
OFF=88.0

class Regs:
    def __init__(self,start,limit,p): self.n=start; self.limit=limit; self.p=p
    def get(self,k=1,al=1):
        self.n=(self.n+al-1)//al*al; r=self.n; self.n+=k
        assert self.n<=self.limit, 'out of regs'; return r
def v(r,k=1): return f'v{r}' if k==1 else f'v[{r}:{r+k-1}]'
def s(r,k=1): return f's{r}' if k==1 else f's[{r}:{r+k-1}]'

def srd(a,r,ptr,size,off=0):
    if off:
        a(f's_add_u32 {s(r)}, {s(ptr)}, {off}\ns_addc_u32 {s(r+1)}, {s(ptr+1)}, 0')
    else:
        a(f's_mov_b32 {s(r)}, {s(ptr)}\ns_mov_b32 {s(r+1)}, {s(ptr+1)}')
    a(f's_mov_b32 {s(r+2)}, {size}\ns_mov_b32 {s(r+3)}, 0x20000')

S_W=3; S_QB=4; S_HG=5; S_X=6; S_J=7
def common(a,lab):
    a(f'''s_cmp_ge_u32 s2, 256
    s_cbranch_scc1 {lab}_end
    v_lshrrev_b32 v1, 6, v0
    v_and_b32 v0, 63, v0
    s_and_b32 s{S_X}, s2, 7
    v_readfirstlane_b32 s{S_W}, v1
    s_lshr_b32 s{S_J}, s2, 3
    s_lshr_b32 s{S_QB}, s{S_X}, 1
    s_lshl_b32 s{S_QB}, s{S_QB}, 3
    s_and_b32 s8, s{S_J}, 7
    s_add_u32 s{S_QB}, s{S_QB}, s8
    s_and_b32 s{S_HG}, s{S_X}, 1
    s_lshl_b32 s{S_HG}, s{S_HG}, 2
    s_lshr_b32 s8, s{S_J}, 3
    s_add_u32 s{S_HG}, s{S_HG}, s8''')

def swap_low2(a,dst,src,t):
    a(f'''v_and_b32 {v(t)}, 1, {v(src)}
    v_lshlrev_b32 {v(t)}, 1, {v(t)}
    v_bfe_u32 {v(dst)}, {v(src)}, 1, 1
    v_or_b32 {v(t)}, {v(t)}, {v(dst)}
    v_and_b32 {v(dst)}, 4, {v(src)}
    v_or_b32 {v(dst)}, {v(dst)}, {v(t)}''')

def tr_lane_parts(a,R):
    r=R.get(); h=R.get(); dq=R.get(); t=R.get(); t2=R.get()
    a(f'''v_bfe_u32 {v(r)}, v0, 2, 2
    v_lshrrev_b32 {v(h)}, 5, v0
    v_bfe_u32 {v(t)}, v0, 4, 1
    v_lshlrev_b32 {v(t)}, 2, {v(t)}
    v_and_b32 {v(t2)}, 3, v0
    v_or_b32 {v(t)}, {v(t)}, {v(t2)}''')
    swap_low2(a,dq,t,t2)
    a(f'v_lshlrev_b32 {v(dq)}, 3, {v(dq)}')
    return r,h,dq

def gemm_w_addr(a,R,r,h,dq,S_HD,S_KSF):
    w1=R.get(); w2=R.get(); t=R.get()
    a(f'''v_lshlrev_b32 {v(w1)}, 3, {v(h)}
    v_add_u32 {v(w1)}, {v(w1)}, {v(r)}
    s_lshl_b32 s8, s{S_KSF}, 4
    v_add_u32 {v(w1)}, s8, {v(w1)}
    v_lshlrev_b32 {v(w1)}, 8, {v(w1)}
    v_xor_b32 {v(t)}, s{S_HD}, {v(r)}
    v_lshlrev_b32 {v(t)}, 6, {v(t)}
    v_add3_u32 {v(w1)}, {v(w1)}, {v(t)}, {v(dq)}
    v_add_u32 {v(w1)}, 0x2000, {v(w1)}
    v_xor_b32 {v(w2)}, 0x1000, {v(w1)}''')
    return w1,w2

def w_dma_voff(a,R,colbytes_sreg):
    o=R.get(); t=R.get()
    a(f'''v_lshrrev_b32 {v(o)}, 4, v0
    v_lshlrev_b32 {v(t)}, 2, {v(o)}
    v_xor_b32 {v(t)}, {v(t)}, v0
    v_and_b32 {v(t)}, 15, {v(t)}
    v_lshlrev_b32 {v(t)}, 4, {v(t)}
    s_lshl_b32 s8, s{S_W}, 3
    v_add_u32 {v(o)}, s8, {v(o)}
    v_lshlrev_b32 {v(o)}, 11, {v(o)}
    v_add3_u32 {v(o)}, {v(o)}, {v(t)}, s{colbytes_sreg}''')
    return o

def k1():
    a=Asm(); L='k1'
    common(a,L)
    R=Regs(2,256,'v')
    P_AX,P_S,P_BX,P_WQ,P_WK,P_WV,P_WS=10,12,16,18,20,22,24
    SA,SB,SK,SWS=28,32,36,40
    FA,FB=44,46
    S_HD,S_KH,S_OWN,S_KSF=48,49,50,51
    S_C,S_SLOT,S_NSLOT,S_OA,S_OB,S_IA,S_IB,S_MA,S_MB,S_T=52,53,54,55,56,57,58,59,60,61
    a(f'''s_load_dwordx2 {s(P_AX,2)}, s[0:1], {KA['ax']}
    s_load_dwordx4 {s(P_S,4)}, s[0:1], {KA['sre']}
    s_load_dwordx8 {s(P_BX,8)}, s[0:1], {KA['bx']}
    s_load_dwordx2 {s(P_WS,2)}, s[0:1], {KA['ws']}
    s_and_b32 s{S_HD}, s{S_W}, 3
    s_lshr_b32 s{S_KH}, s{S_W}, 2
    s_xor_b32 s{S_OWN}, s{S_KH}, s{S_HD}
    s_and_b32 s{S_OWN}, s{S_OWN}, 1
    s_lshr_b32 s{S_KSF}, s{S_HD}, 1
    s_lshl_b32 s8, s{S_KH}, 1
    s_add_u32 s{S_KSF}, s{S_KSF}, s8''')
    vX=R.get(); vKV=R.get(); t=R.get(); t2=R.get()
    a(f'''v_lshrrev_b32 {v(vX)}, 3, v0
    s_lshl_b32 s8, s{S_W}, 3
    v_add_u32 {v(vX)}, s8, {v(vX)}
    v_lshrrev_b32 {v(t)}, 1, {v(vX)}
    v_xor_b32 {v(t)}, {v(t)}, v0
    v_and_b32 {v(t)}, 7, {v(t)}
    v_lshlrev_b32 {v(t)}, 4, {v(t)}
    s_lshl_b32 s8, s{S_QB}, 6
    v_add_u32 {v(vX)}, s8, {v(vX)}
    v_lshl_add_u32 {v(vX)}, {v(vX)}, 11, {v(t)}
    s_lshl_b32 s9, s{S_HG}, 8''')
    vW=w_dma_voff(a,R,9)
    a(f'''s_lshl_b32 s8, s{S_W}, 7
    v_add_u32 {v(vKV)}, s8, v0
    v_lshlrev_b32 {v(vKV)}, 6, {v(vKV)}
    s_and_b32 s8, s{S_HG}, 3
    s_lshl_b32 s8, s8, 4
    v_add_u32 {v(vKV)}, s8, {v(vKV)}
    s_waitcnt lgkmcnt(0)''')
    srd(a,SA,P_BX,4<<20); srd(a,SB,P_WQ,2<<20)
    a(f'''s_cmp_ge_u32 s{S_HG}, 4
    s_cselect_b32 {s(SK)}, {s(P_WV)}, {s(P_WK)}
    s_cselect_b32 {s(SK+1)}, {s(P_WV+1)}, {s(P_WK+1)}
    s_mov_b32 {s(SK+2)}, 65536
    s_mov_b32 {s(SK+3)}, 0x20000''')
    KVW=6*SLOT
    a(f'''s_lshl_b32 s{S_MA}, s{S_W}, 10
    s_lshl_b32 s{S_MB}, s{S_W}, 11
    s_add_u32 s{S_MB}, s{S_MB}, 8192
    s_add_u32 s8, s{S_MB}, {KVW-8192}
    s_mov_b32 m0, s8
    s_mov_b32 s9, {4096-1024}
    buffer_load_dwordx4 {v(vKV)}, {s(SK,4)}, 0 offen lds
    buffer_load_dwordx4 {v(vKV)}, {s(SK,4)}, s9 offen offset:1024 lds
    s_mov_b32 s{S_OA}, 0
    s_mov_b32 s{S_OB}, 0
    s_mov_b32 s{S_IA}, 128
    s_mov_b32 s{S_IB}, {64*2048}
    s_mov_b32 s{S_NSLOT}, 0''')
    def issue():
        return [f's_add_u32 m0, s{S_NSLOT}, s{S_MA}\ns_add_u32 s{S_T}, s{S_OB}, {8192-1024}\nbuffer_load_dwordx4 {v(vX)}, {s(SA,4)}, s{S_OA} offen lds',
                f's_add_u32 m0, s{S_NSLOT}, s{S_MB}\ns_add_u32 s{S_OA}, s{S_OA}, s{S_IA}\nbuffer_load_dwordx4 {v(vW)}, {s(SB,4)}, s{S_OB} offen lds',
                f'buffer_load_dwordx4 {v(vW)}, {s(SB,4)}, s{S_T} offen offset:1024 lds\ns_add_u32 s{S_OB}, s{S_OB}, s{S_IB}',
                f's_add_u32 s{S_NSLOT}, s{S_NSLOT}, {SLOT}\ns_cmp_eq_u32 s{S_NSLOT}, {6*SLOT}\ns_cselect_b32 s{S_NSLOT}, 0, s{S_NSLOT}']
    a(f's_mov_b32 s{S_C}, 0')
    a.label(f'{L}_pro')
    for g in issue(): a(g)
    a(f'''s_add_u32 s{S_C}, s{S_C}, 1
    s_cmp_lt_u32 s{S_C}, 5
    s_cbranch_scc1 {L}_pro''')
    srd(a,SWS,P_WS,16<<20)
    r,h,dq=tr_lane_parts(a,R)
    w1,w2=gemm_w_addr(a,R,r,h,dq,S_HD,S_KSF)
    x=[R.get() for _ in range(4)]
    kv=R.get()
    a(f'''v_and_b32 {v(t)}, 31, v0
    v_bfe_u32 {v(t2)}, v0, 1, 3
    s_lshl_b32 s8, s{S_KSF}, 1
    v_add_u32 {v(x[0])}, s8, {v(h)}
    v_xor_b32 {v(x[0])}, {v(x[0])}, {v(t2)}
    v_lshlrev_b32 {v(x[0])}, 4, {v(x[0])}
    v_lshl_add_u32 {v(x[0])}, {v(t)}, 7, {v(x[0])}
    s_lshl_b32 s8, s{S_OWN}, 12
    v_add_u32 {v(x[0])}, s8, {v(x[0])}
    v_xor_b32 {v(x[1])}, 0x1000, {v(x[0])}
    v_xor_b32 {v(x[2])}, 32, {v(x[0])}
    v_xor_b32 {v(x[3])}, 32, {v(x[1])}
    v_lshlrev_b32 {v(kv)}, 3, {v(h)}
    v_add_u32 {v(kv)}, {v(kv)}, {v(r)}
    s_lshl_b32 s8, s{S_KSF}, 4
    v_add_u32 {v(kv)}, s8, {v(kv)}
    v_lshlrev_b32 {v(kv)}, 4, {v(kv)}
    v_and_b32 {v(t)}, 1, v0
    v_lshlrev_b32 {v(t)}, 3, {v(t)}
    v_add_u32 {v(kv)}, {v(kv)}, {v(t)}
    v_add_u32 {v(kv)}, {KVW}, {v(kv)}''')
    vFD=R.get(); vFM=R.get()
    S_RHF,S_DB=62,63
    a(f'''s_and_b32 s{S_RHF}, s{S_J}, 1
    s_lshr_b32 s{S_DB}, s{S_J}, 1
    v_lshrrev_b32 {v(vFD)}, 3, v0
    v_bfe_u32 {v(t)}, {v(vFD)}, 1, 1
    v_lshlrev_b32 {v(t)}, 2, {v(t)}
    v_xor_b32 {v(t)}, {v(t)}, v0
    v_and_b32 {v(t)}, 7, {v(t)}
    v_lshlrev_b32 {v(t)}, 4, {v(t)}
    s_lshl_b32 s8, s{S_W}, 3
    v_add_u32 {v(vFD)}, s8, {v(vFD)}
    v_lshl_add_u32 {v(vFD)}, {v(vFD)}, 14, {v(t)}
    s_lshl_b32 s8, s{S_X}, 11
    s_lshl_b32 s9, s{S_DB}, 7
    s_add_u32 s8, s8, s9
    v_add_u32 {v(vFD)}, s8, {v(vFD)}
    v_lshrrev_b32 {v(vFM)}, 3, v0
    v_lshrrev_b32 {v(t)}, 1, {v(vFM)}
    v_xor_b32 {v(t)}, {v(t)}, v0
    v_and_b32 {v(t)}, 7, {v(t)}
    v_lshlrev_b32 {v(t)}, 4, {v(t)}
    s_lshl_b32 s8, s{S_W}, 4
    v_add_u32 {v(vFM)}, s8, {v(vFM)}
    v_lshl_add_u32 {v(vFM)}, {v(vFM)}, 15, {v(t)}
    s_cmp_eq_u32 s{S_RHF}, 1
    s_cselect_b32 {s(FB)}, {s(P_S+2)}, {s(P_S)}
    s_cselect_b32 {s(FB+1)}, {s(P_S+3)}, {s(P_S+1)}''')
    vFM2=R.get()
    a(f'v_xor_b32 {v(vFM2)}, 64, {v(vFM)}')
    accO=R.get(16,4); accT=R.get(16,4); accK=R.get(16,4)
    sets=[]
    for _ in range(2):
        sets.append(dict(W1=R.get(4,4),W2=R.get(4,4),X=[R.get(4,4) for _ in range(4)],K=R.get(4,4)))
    ad=[R.get() for _ in range(6)]
    vW2=R.get()
    a(f'v_mov_b32 {v(vW2)}, {v(vW)}')
    for rr in list(range(accO,accO+48))+list(range(sets[1]['W1'],sets[1]['W1']+28)): a(f'v_mov_b32 {v(rr)}, 0')
    a(f's_mov_b32 s{S_C}, 0\ns_mov_b32 s{S_SLOT}, 0\ns_mov_b32 s64, {8192-1024}')
    def issue2():
        return [f's_add_u32 m0, s{S_NSLOT}, s{S_MA}\ns_add_u32 s{S_T}, s{S_OB}, s64\nbuffer_load_dwordx4 {v(vX)}, {s(SA,4)}, s{S_OA} offen lds',
                f's_add_u32 m0, s{S_NSLOT}, s{S_MB}\ns_add_u32 s{S_OA}, s{S_OA}, s{S_IA}\nbuffer_load_dwordx4 {v(vW)}, {s(SB,4)}, s{S_OB} offen lds',
                f'buffer_load_dwordx4 {v(vW2)}, {s(SB,4)}, s{S_T} offen offset:1024 lds\ns_add_u32 s{S_OB}, s{S_OB}, s{S_IB}',
                f's_add_u32 s{S_NSLOT}, s{S_NSLOT}, {SLOT}\ns_cmp_eq_u32 s{S_NSLOT}, {6*SLOT}\ns_cselect_b32 s{S_NSLOT}, 0, s{S_NSLOT}']
    def mfmas(st):
        m=lambda acc,A,B: f'v_mfma_f32_32x32x16_bf16 {v(acc,16)}, {v(A,4)}, {v(B,4)}, {v(acc,16)}'
        return [m(accO,st['W1'],st['X'][0]), m(accT,st['W1'],st['X'][1]), m(accK,st['K'],st['X'][0]), m(accO,st['W2'],st['X'][2]), m(accT,st['W2'],st['X'][3])]
    def half(cur,prev,odd):
        a('s_waitcnt vmcnt(12)\ns_barrier')
        M=mfmas(prev)
        rel=[w1,w2]+x
        adds=[f'v_add_u32 {v(ad[i])}, s{S_SLOT}, {v(rel[i])}' for i in range(6)]
        a(M[0])
        a('\n'.join(adds[:3]))
        a(f'''ds_read_b64_tr_b16 {v(cur['W1'],2)}, {v(ad[0])}
        ds_read_b64_tr_b16 {v(cur['W1']+2,2)}, {v(ad[0])} offset:1024
        ds_read_b128 {v(cur['X'][0],4)}, {v(ad[2])}''')
        a(M[1])
        a('\n'.join(adds[3:]))
        a(f'''ds_read_b128 {v(cur['X'][1],4)}, {v(ad[3])}
        ds_read_b64_tr_b16 {v(cur['K'],2)}, {v(kv)}
        ds_read_b64_tr_b16 {v(cur['K']+2,2)}, {v(kv)} offset:64''')
        a(M[2])
        a(f'''ds_read_b64_tr_b16 {v(cur['W2'],2)}, {v(ad[1])}
        ds_read_b64_tr_b16 {v(cur['W2']+2,2)}, {v(ad[1])} offset:1024
        ds_read_b128 {v(cur['X'][2],4)}, {v(ad[4])}
        ds_read_b128 {v(cur['X'][3],4)}, {v(ad[5])}
        v_add_u32 {v(kv)}, 0x400, {v(kv)}''')
        a(M[3])
        if odd:
            a(f'''s_cmp_eq_u32 s{S_C}, 10
            s_cbranch_scc1 {L}_switch''')
            a.label(f'{L}_switched')
            a(f'''s_cmp_eq_u32 s{S_C}, 14
            s_cbranch_scc1 {L}_noissue''')
        g=issue2()
        a(g[0]); a(g[1]); a(g[2]); a(g[3])
        if odd: a.label(f'{L}_noissue')
        a(M[4])
        a(f'''s_add_u32 s{S_SLOT}, s{S_SLOT}, {SLOT}
        s_cmp_eq_u32 s{S_SLOT}, {6*SLOT}
        s_cselect_b32 s{S_SLOT}, 0, s{S_SLOT}''')
        if odd: a(f's_add_u32 s{S_C}, s{S_C}, 2\ns_cmp_lt_u32 s{S_C}, 16')
        a('s_waitcnt lgkmcnt(0)')
    a.label(f'{L}_loop')
    half(sets[0],sets[1],False)
    half(sets[1],sets[0],True)
    a(f's_cbranch_scc1 {L}_loop')
    for m in mfmas(sets[1]): a(m)
    a('s_barrier')
    EXQ=2*SLOT; EXK=EXQ+32768
    e1=ad[0]; e2=ad[1]; kw=ad[2]; S_SB=65
    a(f'''s_lshl_b32 s8, s{S_W}, 12
    s_add_u32 s8, s8, {EXQ}
    v_lshlrev_b32 {v(t)}, 4, v0
    v_add_u32 {v(e1)}, s8, {v(t)}''')
    a(f'''s_xor_b32 s8, s{S_W}, 4
    s_lshl_b32 s8, s8, 12
    s_add_u32 s8, s8, {EXQ}
    v_add_u32 {v(e2)}, s8, {v(t)}''')
    a(f'''s_cmp_ge_u32 s{S_HG}, 4
    s_cselect_b32 s{S_SB}, 128, 4
    s_cselect_b32 s8, 4, 32
    s_cselect_b32 s9, 512, 16
    v_and_b32 {v(t2)}, 31, v0
    v_mul_lo_u32 {v(kw)}, {v(t2)}, s8
    v_mul_lo_u32 {v(t2)}, {v(h)}, s9
    v_add_u32 {v(kw)}, {v(kw)}, {v(t2)}
    s_lshl_b32 s8, s{S_OWN}, 12
    s_lshl_b32 s9, s{S_KSF}, 10
    s_add_u32 s8, s8, s9
    s_add_u32 s8, s8, {EXK}
    v_add_u32 {v(kw)}, s8, {v(kw)}''')
    for b in range(4):
        a(f'ds_write_b32 {v(kw)}, {v(accK+b)}')
        if b<3: a(f'v_add_u32 {v(kw)}, s{S_SB}, {v(kw)}')
    for i in range(4): a(f'ds_write_b128 {v(e1)}, {v(accT+4*i,4)} offset:{1024*i}')
    cp=sets[0]['W1']
    a(f'''v_mov_b32 {v(cp)}, 0xbf803f80
    v_mov_b32 {v(cp+1)}, 0xbf803f80
    v_mov_b32 {v(cp+2)}, 0xbf803f80
    v_mov_b32 {v(cp+3)}, 0xbf803f80
    v_mov_b32 {v(t2)}, {KVW}
    ds_write_b128 {v(t2)}, {v(cp,4)}
    s_waitcnt lgkmcnt(0) vmcnt(0)
    s_barrier''')
    for i in range(4): a(f'ds_read_b128 {v(accT+4*i,4)}, {v(e2)} offset:{1024*i}')
    a(f's_cmp_lg_u32 s{S_W}, 0\ns_cbranch_scc1 {L}_nokv')
    pk=sets[0]['W1']
    ra=ad[3]; ga=ad[4]
    a(f'''s_cmp_ge_u32 s{S_HG}, 4
    s_cbranch_scc1 {L}_vtype
    v_and_b32 {v(t)}, 31, v0
    v_lshlrev_b32 {v(ra)}, 5, {v(t)}
    v_lshlrev_b32 {v(ga)}, 4, {v(t)}
    s_and_b32 s8, s{S_HG}, 3
    s_lshl_b32 s8, s8, 9
    v_add_u32 {v(ga)}, s8, {v(ga)}
    s_branch {L}_kvj''')
    a.label(f'{L}_vtype')
    a(f'''v_and_b32 {v(t)}, 7, v0
    v_bfe_u32 {v(t2)}, v0, 3, 2
    v_lshlrev_b32 {v(ra)}, 7, {v(t)}
    v_lshl_add_u32 {v(ra)}, {v(t2)}, 5, {v(ra)}
    v_lshlrev_b32 {v(ga)}, 9, {v(t2)}
    v_and_b32 {v(t2)}, 3, v0
    v_lshl_add_u32 {v(ga)}, {v(t2)}, 4, {v(ga)}
    v_bfe_u32 {v(t2)}, v0, 2, 1
    v_lshl_add_u32 {v(ga)}, {v(t2)}, 7, {v(ga)}
    s_and_b32 s8, s{S_HG}, 1
    s_lshl_b32 s8, s8, 6
    s_bfe_u32 s9, s{S_HG}, 0x10001
    s_lshl_b32 s9, s9, 8
    s_add_u32 s8, s8, s9
    s_add_u32 s8, s8, 2048
    v_add_u32 {v(ga)}, s8, {v(ga)}''')
    a.label(f'{L}_kvj')
    a(f'''v_lshl_add_u32 {v(ra)}, {v(h)}, 12, {v(ra)}
    v_add_u32 {v(ra)}, {EXK}, {v(ra)}
    v_lshl_add_u32 {v(ga)}, {v(h)}, 12, {v(ga)}''')
    for p in range(4):
        a(f'ds_read_b128 {v(pk+8*p,4)}, {v(ra)} offset:{1024*p}\nds_read_b128 {v(pk+8*p+4,4)}, {v(ra)} offset:{1024*p+16}')
    a('s_waitcnt lgkmcnt(0)')
    for p in range(1,4):
        for i in range(8): a(f'v_add_f32 {v(pk+i)}, {v(pk+i)}, {v(pk+8*p+i)}')
    for i in range(4): a(f'v_cvt_pk_bf16_f32 {v(pk+i)}, {v(pk+2*i)}, {v(pk+2*i+1)}')
    a(f'''s_lshl_b32 s8, s{S_QB}, 13
    buffer_store_dwordx4 {v(pk,4)}, {v(ga)}, {s(SWS,4)}, s8 offen''')
    a.label(f'{L}_nokv')
    a(f's_waitcnt lgkmcnt(0)\ns_mov_b32 s8, {QSCALE}')
    for i in range(16): a(f'v_add_f32 {v(accO+i)}, {v(accO+i)}, {v(accT+i)}')
    for i in range(16): a(f'v_mul_f32 {v(accO+i)}, s8, {v(accO+i)}')
    for i in range(8): a(f'v_cvt_pk_bf16_f32 {v(accT+i)}, {v(accO+2*i)}, {v(accO+2*i+1)}')
    a(f'''s_lshl_b32 s8, s2, 3
    s_add_u32 s8, s8, s{S_W}
    s_lshl_b32 s8, s8, 11
    s_add_u32 s8, s8, {WS_Q}
    v_lshlrev_b32 {v(t)}, 4, v0
    buffer_store_dwordx4 {v(accT,4)}, {v(t)}, {s(SWS,4)}, s8 offen
    buffer_store_dwordx4 {v(accT+4,4)}, {v(t)}, {s(SWS,4)}, s8 offen offset:1024''')
    fd=ad[0]; fm=[ad[1],ad[2],ad[3],ad[4]]; mul=ad[5]; fa=[x[0],x[1],x[2],x[3]]; fda=w1
    a(f'''v_lshlrev_b32 {v(fd)}, 3, {v(h)}
    v_add_u32 {v(fd)}, {v(fd)}, {v(r)}
    v_lshlrev_b32 {v(fd)}, 7, {v(fd)}
    v_lshrrev_b32 {v(t)}, 1, {v(r)}
    s_and_b32 s8, s{S_W}, 1
    v_xor_b32 {v(t)}, s8, {v(t)}
    v_lshlrev_b32 {v(t)}, 6, {v(t)}
    v_add3_u32 {v(fd)}, {v(fd)}, {v(t)}, {v(dq)}
    v_and_b32 {v(t)}, 31, v0
    v_bfe_u32 {v(t2)}, v0, 1, 3
    v_xor_b32 {v(t2)}, {v(t2)}, {v(h)}
    v_lshlrev_b32 {v(t2)}, 4, {v(t2)}
    v_lshl_add_u32 {v(fm[0])}, {v(t)}, 7, {v(t2)}
    s_lshr_b32 s8, s{S_W}, 1
    s_lshl_b32 s9, s8, 12
    s_add_u32 s9, s9, 8192
    v_add_u32 {v(fm[0])}, s9, {v(fm[0])}
    v_xor_b32 {v(fm[1])}, 32, {v(fm[0])}
    v_xor_b32 {v(fm[2])}, 64, {v(fm[0])}
    v_xor_b32 {v(fm[3])}, 0x60, {v(fm[0])}
    s_xor_b32 s9, s{S_RHF}, 1
    s_or_b32 s8, s8, s9
    v_or_b32 {v(t)}, s8, {v(t)}
    v_cmp_eq_u32 vcc, 0, {v(t)}
    v_mov_b32 {v(t2)}, {KVW}
    v_cndmask_b32 {v(mul)}, 1, 0, vcc''')
    for i in range(4): a(f'v_cndmask_b32 {v(fm[i])}, {v(fm[i])}, {v(t2)}, vcc')
    accF=accK
    for i in range(16): a(f'v_mov_b32 {v(accF+i)}, 0')
    fr=sets[0]['W1']
    a(f's_mov_b32 s{S_SLOT}, {4*SLOT}\ns_mov_b32 s{S_C}, 0')
    a.label(f'{L}_floop')
    a(f'v_add_u32 {v(fda)}, s{S_SLOT}, {v(fd)}')
    for i in range(4): a(f'v_mad_u32_u24 {v(fa[i])}, s{S_SLOT}, {v(mul)}, {v(fm[i])}')
    for ks in range(4):
        a(f'''ds_read_b64_tr_b16 {v(fr+8*ks,2)}, {v(fda)} offset:{2048*ks}
        ds_read_b64_tr_b16 {v(fr+8*ks+2,2)}, {v(fda)} offset:{2048*ks+512}
        ds_read_b128 {v(fr+8*ks+4,4)}, {v(fa[ks])}''')
    a(f'''s_add_u32 s{S_SLOT}, s{S_SLOT}, {SLOT}
    s_cmp_eq_u32 s{S_SLOT}, {6*SLOT}
    s_cselect_b32 s{S_SLOT}, 0, s{S_SLOT}
    s_add_u32 s{S_C}, s{S_C}, 1
    s_cmp_lt_u32 s{S_C}, 4''')
    for ks in range(4):
        a(f's_waitcnt lgkmcnt({9-3*ks})\nv_mfma_f32_32x32x16_bf16 {v(accF,16)}, {v(fr+8*ks,4)}, {v(fr+8*ks+4,4)}, {v(accF,16)}')
    a(f's_cbranch_scc1 {L}_floop')
    a(f'''v_and_b32 {v(t)}, 31, v0
    v_lshlrev_b32 {v(t)}, 14, {v(t)}
    v_lshl_add_u32 {v(t)}, {v(h)}, 4, {v(t)}
    s_lshl_b32 s8, s{S_RHF}, 2
    s_lshr_b32 s9, s{S_W}, 1
    s_add_u32 s8, s8, s9
    s_lshl_b32 s8, s8, 19
    s_lshl_b32 s9, s{S_X}, 11
    s_add_u32 s8, s8, s9
    s_lshl_b32 s9, s{S_DB}, 7
    s_add_u32 s8, s8, s9
    s_and_b32 s9, s{S_W}, 1
    s_lshl_b32 s9, s9, 6
    s_add_u32 s8, s8, s9
    s_add_u32 s8, s8, {WS_G}''')
    for i in range(8): a(f'v_cvt_pk_bf16_f32 {v(fr+i)}, {v(accF+2*i)}, {v(accF+2*i+1)}')
    a(f'''buffer_store_dwordx4 {v(fr,4)}, {v(t)}, {s(SWS,4)}, s8 offen
    buffer_store_dwordx4 {v(fr+4,4)}, {v(t)}, {s(SWS,4)}, s8 offen offset:32''')
    a.label(f'{L}_end')
    a('s_endpgm')
    a.label(f'{L}_switch')
    a(f'''s_mov_b32 {s(SA)}, {s(P_AX)}
    s_mov_b32 {s(SA+1)}, {s(P_AX+1)}
    s_mov_b32 {s(SB)}, {s(FB)}
    s_mov_b32 {s(SB+1)}, {s(FB+1)}
    s_mov_b32 {s(SB+2)}, {8<<20}
    s_mov_b32 s{S_OA}, 0
    s_mov_b32 s{S_OB}, 0
    s_mov_b32 s{S_IA}, {64*16384}
    s_mov_b32 s{S_IB}, 128
    s_mov_b32 s64, {8*32768-1024}
    v_mov_b32 {v(vX)}, {v(vFD)}
    v_mov_b32 {v(vW)}, {v(vFM)}
    v_mov_b32 {v(vW2)}, {v(vFM2)}
    s_branch {L}_switched''')
    return a,R.n

def k2():
    a=Asm(); L='k2'
    common(a,L)
    R=Regs(2,256,'v')
    P_WS=10; SKV=12; SWS=16
    S_C,S_NSLOT,S_OFF,S_MW,S_CUR,S_NXT,S_FB=20,21,22,23,24,25,26
    CH=32768
    l16=R.get(); vD=R.get(); cur=R.get(); nxt=R.get(); idx=R.get(); t=R.get(); t2=R.get(); rl=R.get()
    Q=R.get(8,4); ones=R.get(4,4); KF=R.get(8,4); VF=R.get(8,4); negm=R.get(16,4); O=R.get(16,4); l=R.get(4,4)
    S=[R.get(16,4) for _ in range(4)]
    a(f'''s_load_dwordx2 {s(P_WS,2)}, s[0:1], {KA['ws']}
    v_lshlrev_b32 {v(l16)}, 4, v0
    s_lshl_b32 s{S_MW}, s{S_W}, 12
    v_add_u32 {v(vD)}, s{S_MW}, {v(l16)}
    s_lshl_b32 s8, s2, 3
    s_add_u32 s8, s8, s{S_W}
    s_lshl_b32 s8, s8, 11
    s_add_u32 s8, s8, {WS_Q}
    s_mov_b32 s{S_FB}, 0
    s_waitcnt lgkmcnt(0)''')
    srd(a,SKV,P_WS,64*4096,WS_KV); srd(a,SWS,P_WS,16<<20)
    a(f'''buffer_load_dwordx4 {v(Q,4)}, {v(l16)}, {s(SWS,4)}, s8 offen
    buffer_load_dwordx4 {v(Q+4,4)}, {v(l16)}, {s(SWS,4)}, s8 offen offset:1024
    v_mov_b32 {v(idx)}, 0xdddddddd
    v_bfe_u32 {v(t)}, v0, 2, 1
    v_cmp_eq_u32 vcc, 0, {v(t)}
    v_mov_b32 {v(t2)}, 0x3f803f80
    v_cndmask_b32 {v(ones)}, 0, {v(t2)}, vcc
    v_cndmask_b32 {v(ones+1)}, 0, {v(t2)}, vcc
    v_cndmask_b32 {v(ones+2)}, {v(t2)}, 0, vcc
    v_cndmask_b32 {v(ones+3)}, {v(t2)}, 0, vcc''')
    def dma():
        a(f's_add_u32 m0, s{S_NSLOT}, s{S_MW}')
        a(f's_add_u32 s{S_NSLOT}, s{S_NSLOT}, {CH}')
        for i in range(4): a(f'buffer_load_dwordx4 {v(vD)}, {s(SKV,4)}, s{S_OFF} offen offset:{1024*i} lds')
        a(f'''s_add_u32 s{S_OFF}, s{S_OFF}, {CH}
        s_cmp_eq_u32 s{S_NSLOT}, {3*CH}
        s_cselect_b32 s{S_NSLOT}, 0, s{S_NSLOT}''')
    a.label(f'{L}_start')
    a(f's_mov_b32 s{S_NSLOT}, 0\ns_mov_b32 s{S_OFF}, 0')
    dma(); dma()
    for i in range(16): a(f'v_mov_b32 {v(O+i)}, 0')
    for i in range(16): a(f'v_mov_b32 {v(S[3]+i)}, 0')
    for i in range(4): a(f'v_mov_b32 {v(l+i)}, 0')
    for i in range(8): a(f'v_mov_b32 {v(VF+i)}, 0')
    a(f'''v_mov_b32 {v(cur)}, {v(l16)}
    v_add_u32 {v(nxt)}, {CH}, {v(l16)}
    s_mov_b32 s{S_NXT}, {CH}
    s_waitcnt vmcnt(4)
    s_barrier''')
    def rdK(dst,ad,tile): return [f'ds_read_b128 {v(dst+4*i,4)}, {v(ad)} offset:{tile*4096+1024*i}' for i in range(2)]
    def rdV(dst,ad,tile): return [f'ds_read_b128 {v(dst+4*i,4)}, {v(ad)} offset:{tile*4096+2048+1024*i}' for i in range(2)]
    def qk(D,K,C): return [f'v_mfma_f32_32x32x16_bf16 {v(D,16)}, {v(K,4)}, {v(Q,4)}, {C}',
                           f'v_mfma_f32_32x32x16_bf16 {v(D,16)}, {v(K+4,4)}, {v(Q+4,4)}, {v(D,16)}']
    K1=S[2]
    a('\n'.join(rdK(KF,cur,0)+rdK(K1,cur,1)))
    a(f's_cmp_lg_u32 s{S_FB}, 0\ns_cbranch_scc1 {L}_havem')
    a('s_waitcnt lgkmcnt(2)'); a('\n'.join(qk(S[0],KF,'0')))
    a('s_waitcnt lgkmcnt(0)'); a('\n'.join(qk(S[1],K1,'0')))
    a(f'v_max3_f32 {v(t)}, {v(S[0])}, {v(S[0]+1)}, {v(S[0]+2)}')
    for i in range(3,15,2): a(f'v_max3_f32 {v(t)}, {v(t)}, {v(S[0]+i)}, {v(S[0]+i+1)}')
    a(f'v_max3_f32 {v(t)}, {v(t)}, {v(S[0]+15)}, {v(S[1])}')
    for i in range(1,15,2): a(f'v_max3_f32 {v(t)}, {v(t)}, {v(S[1]+i)}, {v(S[1]+i+1)}')
    a(f'''v_max_f32 {v(t)}, {v(t)}, {v(S[1]+15)}
    v_mov_b32 {v(t2)}, {v(t)}
    v_permlane32_swap_b32 {v(t)}, {v(t2)}
    v_max_f32 {v(t)}, {v(t)}, {v(t2)}
    v_sub_f32 {v(t)}, {hex(f2u(-OFF))}, {v(t)}''')
    for i in range(16): a(f'v_mov_b32 {v(negm+i)}, {v(t)}')
    a.label(f'{L}_havem')
    a('s_waitcnt lgkmcnt(0)')
    a('\n'.join(qk(S[0],KF,v(negm,16))))
    a('\n'.join(rdK(KF,cur,1)))
    a(f's_mov_b32 s{S_C}, 0\ns_nop 6\ns_waitcnt lgkmcnt(0)')
    a.label(f'{L}_loop')
    for i in range(8):
        c=S[i%4]; n=S[(i+1)%4]; p=S[(i+3)%4]
        E=[f'v_exp_f32 {v(c+j)}, {v(c+j)}' for j in range(16)]
        q=qk(n,KF,v(negm,16))
        pv=[f'v_smfmac_f32_32x32x32_bf16 {v(O,16)}, {v(VF+4*j,4)}, {v(p+8*j,8)}, {v(idx)}' for j in range(2)]
        sm=[f'v_smfmac_f32_16x16x64_bf16 {v(l,4)}, {v(ones,4)}, {v(p+8*j,8)}, {v(idx)}' for j in range(2)]
        dk=rdK(KF,cur,i+2) if i<6 else rdK(KF,nxt,i-6)
        dv=rdV(VF,cur,i)
        a('s_waitcnt lgkmcnt(2)' if True else '')
        a(q[0]); a('\n'.join(E[0:3])); a(q[1])
        if i==6:
            a('s_waitcnt vmcnt(0)\ns_barrier')
        a('\n'.join(dk))
        if i==6: dma()
        a('\n'.join(E[3:6])); a('s_waitcnt lgkmcnt(2)')
        a(pv[0]); a('\n'.join(E[6:8])); a(sm[0]); a('\n'.join(E[8:10])); a(pv[1]); a('\n'.join(E[10:13])); a(sm[1])
        a('\n'.join(dv))
        if i==7:
            a(f'''v_mov_b32 {v(cur)}, {v(nxt)}
            s_add_u32 s{S_NXT}, s{S_NXT}, {CH}
            s_cmp_eq_u32 s{S_NXT}, {3*CH}
            s_cselect_b32 s{S_NXT}, 0, s{S_NXT}
            s_add_u32 s{S_C}, s{S_C}, 1
            v_add_u32 {v(nxt)}, s{S_NXT}, {v(l16)}
            s_cmp_lt_u32 s{S_C}, 8''')
        a('\n'.join(E[13:16]))
    a(f's_cbranch_scc1 {L}_loop')
    p=S[3]
    a('s_waitcnt lgkmcnt(0)')
    for j in range(2):
        a(f'v_smfmac_f32_32x32x32_bf16 {v(O,16)}, {v(VF+4*j,4)}, {v(p+8*j,8)}, {v(idx)}')
        a(f'v_smfmac_f32_16x16x64_bf16 {v(l,4)}, {v(ones,4)}, {v(p+8*j,8)}, {v(idx)}')
    a(f's_cmp_lg_u32 s{S_FB}, 0\ns_cbranch_scc1 {L}_fin')
    a(f'v_add_f32 {v(t)}, abs({v(O)}), abs({v(O+1)})')
    for i in range(2,16): a(f'v_add_f32 {v(t)}, {v(t)}, abs({v(O+i)})')
    a(f'''s_mov_b32 s8, {hex(f2u(2.0**-100))}
    s_mov_b32 s9, {hex(f2u(2.0**126))}
    v_cmp_nge_f32 s[28:29], {v(t)}, s8
    v_cmp_nlt_f32 s[30:31], {v(t)}, s9
    v_cmp_nlt_f32 vcc, {v(l)}, s9
    s_or_b64 s[28:29], s[28:29], s[30:31]
    s_or_b64 s[28:29], s[28:29], vcc
    s_cmp_lg_u64 s[28:29], 0
    s_cselect_b32 s8, 1, 0
    v_mov_b32 {v(t)}, s8
    s_lshl_b32 s8, s{S_W}, 2
    s_add_u32 s8, s8, {3*CH}
    v_mov_b32 {v(t2)}, s8
    ds_write_b32 {v(t2)}, {v(t)}
    v_and_b32 {v(t2)}, 7, v0
    v_lshlrev_b32 {v(t2)}, 2, {v(t2)}
    s_waitcnt lgkmcnt(0) vmcnt(0)
    s_barrier
    ds_read_b32 {v(t)}, {v(t2)} offset:{0}''' .replace('offset:0',''))
    a.ins.pop()
    a(f'''v_add_u32 {v(t2)}, {3*CH}, {v(t2)}
    ds_read_b32 {v(t)}, {v(t2)}
    s_waitcnt lgkmcnt(0)
    v_cmp_ne_u32 vcc, 0, {v(t)}
    s_cbranch_vccnz {L}_fallback''')
    a.label(f'{L}_fin')
    a(f'v_rcp_f32 {v(rl)}, {v(l)}')
    a(f'''s_and_b32 s8, s{S_W}, 3
    s_lshr_b32 s9, s{S_W}, 2
    s_xor_b32 s9, s9, s8
    s_and_b32 s9, s9, 1
    s_lshl_b32 s9, s9, 10
    s_lshl_b32 s28, s{S_HG}, 2
    s_add_u32 s8, s8, s28
    s_lshl_b32 s8, s8, 12
    s_add_u32 s8, s8, s9
    s_lshl_b32 s9, s{S_QB}, 17
    s_add_u32 s8, s8, s9
    s_add_u32 s8, s8, {WS_O}''')
    for i in range(16): a(f'v_mul_f32 {v(O+i)}, {v(O+i)}, {v(rl)}')
    for i in range(8): a(f'v_cvt_pk_bf16_f32 {v(S[0]+i)}, {v(O+2*i)}, {v(O+2*i+1)}')
    a(f'''buffer_store_dwordx4 {v(S[0],4)}, {v(l16)}, {s(SWS,4)}, s8 offen
    buffer_store_dwordx4 {v(S[0]+4,4)}, {v(l16)}, {s(SWS,4)}, s8 offen offset:2048''')
    a.label(f'{L}_end')
    a('s_endpgm')
    a.label(f'{L}_fallback')
    a(f'''s_mov_b32 s{S_FB}, 1
    s_mov_b32 s8, 0
    v_mov_b32 {v(t)}, 0xff800000''')
    a.label(f'{L}_fbl')
    a(f'''buffer_load_dwordx4 {v(KF,4)}, {v(l16)}, {s(SKV,4)}, s8 offen
    buffer_load_dwordx4 {v(KF+4,4)}, {v(l16)}, {s(SKV,4)}, s8 offen offset:1024
    s_waitcnt vmcnt(0)''')
    a('\n'.join(qk(S[0],KF,'0')))
    for i in range(0,16,2): a(f'v_max3_f32 {v(t)}, {v(t)}, {v(S[0]+i)}, {v(S[0]+i+1)}')
    a(f'''s_add_u32 s8, s8, 4096
    s_cmp_lt_u32 s8, {64*4096}
    s_cbranch_scc1 {L}_fbl
    v_mov_b32 {v(t2)}, {v(t)}
    v_permlane32_swap_b32 {v(t)}, {v(t2)}
    v_max_f32 {v(t)}, {v(t)}, {v(t2)}
    v_sub_f32 {v(t)}, 0, {v(t)}''')
    for i in range(16): a(f'v_mov_b32 {v(negm+i)}, {v(t)}')
    a(f's_barrier\ns_branch {L}_start')
    return a,R.n

def k3():
    a=Asm(); L='k3'
    common(a,L)
    R=Regs(2,256,'v')
    P_S,P_H,P_WO,P_OUT,P_WS=12,16,20,22,24
    SA,SB,SO,SR,SI=28,32,36,40,44
    S_HD,S_KH,S_OWN,S_KSF=48,49,50,51
    S_C,S_SLOT,S_NSLOT,S_OA,S_OB,S_MA,S_MB,S_T=52,53,54,55,56,59,60,61
    S_P,S_SIDE,S_T1=62,63,64
    GB=4*SLOT; HB=GB+32768
    a(f'''s_load_dwordx8 {s(P_S,8)}, s[0:1], {KA['sre']}
    s_load_dwordx4 {s(P_WO,4)}, s[0:1], {KA['wo']}
    s_load_dwordx2 {s(P_WS,2)}, s[0:1], {KA['ws']}
    s_and_b32 s{S_HD}, s{S_W}, 3
    s_lshr_b32 s{S_KH}, s{S_W}, 2
    s_mov_b32 s{S_OWN}, s{S_KH}
    s_lshl_b32 s{S_KSF}, s{S_KH}, 1
    s_and_b32 s{S_SIDE}, s{S_J}, 1
    s_lshr_b32 s{S_P}, s{S_J}, 1
    s_lshl_b32 s8, s{S_X}, 4
    s_add_u32 s{S_P}, s{S_P}, s8
    s_sub_u32 s8, 256, s{S_P}
    s_cmp_eq_u32 s{S_P}, 0
    s_cselect_b32 s8, 128, s8
    s_cmp_eq_u32 s{S_SIDE}, 0
    s_cselect_b32 s{S_T1}, s{S_P}, s8''')
    l16=R.get(); vG=R.get(); t=R.get(); t2=R.get(); vA=R.get()
    a(f'''v_lshlrev_b32 {v(l16)}, 4, v0
    s_and_b32 s8, s{S_W}, 3
    s_lshl_b32 s8, s8, 6
    v_xor_b32 {v(vG)}, s8, {v(l16)}
    s_lshl_b32 s{S_MA}, s{S_W}, 10
    s_lshl_b32 s{S_MB}, s{S_W}, 11
    v_add_u32 {v(vA)}, s{S_MA}, {v(l16)}
    s_lshl_b32 s9, s{S_HG}, 8''')
    vW=w_dma_voff(a,R,9)
    a('s_waitcnt lgkmcnt(0)')
    srd(a,SA,P_WS,16<<20); srd(a,SB,P_WO,2<<20); srd(a,SO,P_OUT,8<<20)
    a(f'''s_cmp_eq_u32 s{S_T1}, 128
    s_cselect_b32 s8, 128, s{S_P}
    s_lshl_b32 s8, s8, 14
    s_add_u32 s8, s8, s{S_MB}
    s_add_u32 s8, s8, {WS_G}
    s_add_u32 m0, s{S_MB}, {GB}
    s_lshl_b32 s9, s{S_P}, 14
    buffer_load_dwordx4 {v(vG)}, {s(SA,4)}, s8 offen lds
    buffer_load_dwordx4 {v(vG)}, {s(SA,4)}, s8 offen offset:1024 lds
    s_add_u32 s9, s9, s{S_MB}
    s_add_u32 s9, s9, {WS_G+128*16384}
    s_add_u32 m0, s{S_MB}, {GB+16384}
    s_add_u32 s{S_MB}, s{S_MB}, 8192
    buffer_load_dwordx4 {v(vG)}, {s(SA,4)}, s9 offen lds
    buffer_load_dwordx4 {v(vG)}, {s(SA,4)}, s9 offen offset:1024 lds''')
    r,h,dq=tr_lane_parts(a,R)
    pin=R.get()
    M0a=R.get(4,4); M0b=R.get(4,4); C=R.get(8,4); MS=R.get(8,4); NMS=R.get(8,4); TC=R.get(8,4); TS=R.get(8,4)
    a(f'v_bfe_u32 {v(t)}, v0, 2, 3')
    swap_low2(a,pin,t,t2)
    a(f'''v_lshlrev_b32 {v(pin)}, 2, {v(pin)}
    v_and_b32 {v(t)}, 3, v0
    v_or_b32 {v(pin)}, {v(pin)}, {v(t)}''')
    srd(a,SR,P_S,8<<20); srd(a,SI,P_S+2,8<<20)
    a(f'''v_bfe_u32 {v(t)}, v0, 1, 3
    v_lshlrev_b32 {v(t)}, 8, {v(t)}
    v_add_u32 {v(t)}, s{S_T1}, {v(t)}
    v_lshlrev_b32 {v(t)}, 12, {v(t)}
    buffer_load_dwordx4 {v(M0a,4)}, {v(t)}, {s(SR,4)}, 0 offen
    buffer_load_dwordx4 {v(M0b,4)}, {v(t)}, {s(SI,4)}, 0 offen''')
    SR2,SI2=68,72
    srd(a,SR2,P_H,2<<20); srd(a,SI2,P_H+2,2<<20)
    a(f'''v_lshlrev_b32 {v(t)}, 4, {v(h)}
    v_lshl_add_u32 {v(t2)}, {v(pin)}, 16, {v(t)}
    v_lshl_add_u32 {v(t)}, {v(pin)}, 11, {v(t)}
    buffer_load_dwordx4 {v(C,4)}, {v(t2)}, {s(SR2,4)}, 0 offen
    buffer_load_dwordx4 {v(C+4,4)}, {v(t2)}, {s(SR2,4)}, 0 offen offset:32
    buffer_load_dwordx4 {v(MS,4)}, {v(t2)}, {s(SI2,4)}, 0 offen
    buffer_load_dwordx4 {v(MS+4,4)}, {v(t2)}, {s(SI2,4)}, 0 offen offset:32
    buffer_load_dwordx4 {v(TC,4)}, {v(t)}, {s(SR2,4)}, 0 offen
    buffer_load_dwordx4 {v(TC+4,4)}, {v(t)}, {s(SR2,4)}, 0 offen offset:32
    buffer_load_dwordx4 {v(TS,4)}, {v(t)}, {s(SI2,4)}, 0 offen
    buffer_load_dwordx4 {v(TS+4,4)}, {v(t)}, {s(SI2,4)}, 0 offen offset:32''')
    SOO=76
    a(f'''s_lshl_b32 s8, s{S_QB}, 17
    s_add_u32 s8, s8, {WS_O}
    s_add_u32 {s(SOO)}, {s(P_WS)}, s8
    s_addc_u32 {s(SOO+1)}, {s(P_WS+1)}, 0
    s_mov_b32 {s(SOO+2)}, {128<<10}
    s_mov_b32 {s(SOO+3)}, 0x20000
    s_mov_b32 s{S_OA}, 0
    s_mov_b32 s{S_OB}, 0
    s_mov_b32 s{S_NSLOT}, 0''')
    def issue():
        return [f's_add_u32 m0, s{S_NSLOT}, s{S_MA}\ns_add_u32 s{S_T}, s{S_OB}, {8192-1024}\nbuffer_load_dwordx4 {v(vA)}, {s(SOO,4)}, s{S_OA} offen lds',
                f's_add_u32 m0, s{S_NSLOT}, s{S_MB}\ns_add_u32 s{S_OA}, s{S_OA}, 8192\nbuffer_load_dwordx4 {v(vW)}, {s(SB,4)}, s{S_OB} offen lds',
                f'buffer_load_dwordx4 {v(vW)}, {s(SB,4)}, s{S_T} offen offset:1024 lds\ns_add_u32 s{S_OB}, s{S_OB}, {64*2048}',
                f's_add_u32 s{S_NSLOT}, s{S_NSLOT}, {SLOT}\ns_cmp_eq_u32 s{S_NSLOT}, {6*SLOT}\ns_cselect_b32 s{S_NSLOT}, 0, s{S_NSLOT}']
    a(f's_mov_b32 s{S_C}, 0')
    a.label(f'{L}_pro')
    for g in issue(): a(g)
    a(f'''s_add_u32 s{S_C}, s{S_C}, 1
    s_cmp_lt_u32 s{S_C}, 4
    s_cbranch_scc1 {L}_pro''')
    ga=R.get(); hw=R.get(); hr=R.get()
    a(f'''v_lshlrev_b32 {v(ga)}, 14, {v(h)}
    v_lshl_add_u32 {v(ga)}, {v(r)}, 11, {v(ga)}
    v_lshl_add_u32 {v(ga)}, {v(r)}, 6, {v(ga)}
    v_bfe_u32 {v(t)}, v0, 4, 1
    v_lshl_add_u32 {v(ga)}, {v(t)}, 5, {v(ga)}
    v_and_b32 {v(t)}, 3, v0
    v_lshl_add_u32 {v(ga)}, {v(t)}, 3, {v(ga)}
    s_lshl_b32 s8, s{S_W}, 8
    s_add_u32 s8, s8, {GB}
    v_add_u32 {v(ga)}, s8, {v(ga)}
    v_and_b32 {v(t)}, 31, v0
    v_bfe_u32 {v(t2)}, v0, 2, 2
    s_lshr_b32 s8, s{S_W}, 1
    v_xor_b32 {v(t2)}, s8, {v(t2)}
    v_lshlrev_b32 {v(t2)}, 4, {v(t2)}
    v_lshl_add_u32 {v(hw)}, {v(t)}, 6, {v(t2)}
    v_lshl_add_u32 {v(hw)}, {v(h)}, 13, {v(hw)}
    s_and_b32 s8, s{S_W}, 1
    s_lshl_b32 s8, s8, 3
    s_add_u32 s8, s8, {HB}
    v_add_u32 {v(hw)}, s8, {v(hw)}
    v_bfe_u32 {v(t2)}, {v(pin)}, 2, 2
    v_xor_b32 {v(t2)}, {v(t2)}, {v(h)}
    v_lshlrev_b32 {v(t2)}, 4, {v(t2)}
    v_lshl_add_u32 {v(hr)}, {v(pin)}, 6, {v(t2)}
    s_lshl_b32 s8, s{S_W}, 12
    s_add_u32 s8, s8, {HB}
    v_add_u32 {v(hr)}, s8, {v(hr)}''')
    gx=[R.get() for _ in range(3)]; hr2=R.get()
    for i in range(3): a(f'v_xor_b32 {v(gx[i])}, {64*(i+1)}, {v(ga)}')
    a(f'v_xor_b32 {v(hr2)}, 32, {v(hr)}')
    sg=R.get(); zm=R.get()
    a(f'''v_xor_b32 {v(t)}, v0, {v(h)}
    v_and_b32 {v(t)}, 1, {v(t)}
    v_cmp_eq_u32 s[66:67], 1, {v(t)}
    v_and_b32 {v(t)}, 1, v0
    v_xor_b32 {v(t)}, s{S_SIDE}, {v(t)}
    v_xor_b32 {v(t)}, 1, {v(t)}
    v_and_b32 {v(t)}, {v(t)}, {v(h)}
    s_mov_b32 s8, 0x80008000
    v_mul_lo_u32 {v(sg)}, {v(t)}, s8
    s_cmp_eq_u32 s{S_P}, 0
    s_cselect_b32 s8, 1, 0
    v_and_b32 {v(t)}, s8, {v(h)}
    v_add_u32 {v(zm)}, -1, {v(t)}
    s_waitcnt vmcnt(20)''')
    for i in range(4): a(f'v_cndmask_b32 {v(M0a+i)}, {v(M0a+i)}, {v(M0b+i)}, s[66:67]')
    for i in range(4): a(f'v_xor_b32 {v(M0a+i)}, {v(M0a+i)}, {v(sg)}')
    for i in range(4): a(f'v_and_b32 {v(M0a+i)}, {v(M0a+i)}, {v(zm)}')
    a('s_barrier')
    D=[R.get(16,4) for _ in range(4)]
    fr=R.get(16,4)
    adr=[ga]+gx
    for dd in range(4):
        a(f'ds_read_b64_tr_b16 {v(fr+4*dd,2)}, {v(adr[dd])}\nds_read_b64_tr_b16 {v(fr+4*dd+2,2)}, {v(adr[dd])} offset:8192')
    for dd in range(4):
        a(f's_waitcnt lgkmcnt({6-2*dd})\nv_mfma_f32_32x32x16_bf16 {v(D[dd],16)}, {v(M0a,4)}, {v(fr+4*dd,4)}, 0')
    a('s_waitcnt vmcnt(12)')
    for i in range(8): a(f'v_xor_b32 {v(NMS+i)}, 0x80008000, {v(MS+i)}')
    twc=R.get(16,4); tws=R.get(16,4)
    for i in range(8):
        a(f'v_lshlrev_b32 {v(twc+2*i)}, 16, {v(TC+i)}\nv_and_b32 {v(twc+2*i+1)}, 0xffff0000, {v(TC+i)}')
        a(f'v_lshlrev_b32 {v(tws+2*i)}, 16, {v(TS+i)}\nv_and_b32 {v(tws+2*i+1)}, 0xffff0000, {v(TS+i)}')
    for rr in range(8):
        a(f'''v_cvt_pk_bf16_f32 {v(fr+2*rr)}, {v(D[0]+rr)}, {v(D[1]+rr)}
        v_cvt_pk_bf16_f32 {v(fr+2*rr+1)}, {v(D[2]+rr)}, {v(D[3]+rr)}
        ds_write_b64 {v(hw)}, {v(fr+2*rr,2)} offset:{(8*(rr>>2)+(rr&3))*2048}''')
    a('s_waitcnt lgkmcnt(0)\ns_barrier')
    a(f'''ds_read_b128 {v(fr,4)}, {v(hr)}
    ds_read_b128 {v(fr+8,4)}, {v(hr)} offset:2048
    ds_read_b128 {v(fr+4,4)}, {v(hr2)}
    ds_read_b128 {v(fr+12,4)}, {v(hr2)} offset:2048''')
    Dr,Di,Y=D[0],D[1],D[2]
    mf=lambda d,A,B,c: f'v_mfma_f32_32x32x16_bf16 {v(d,16)}, {v(A,4)}, {v(B,4)}, {c}'
    a('s_waitcnt lgkmcnt(3)')
    a(mf(Dr,fr,C,'0')); a(mf(Di,fr,MS,'0'))
    a('s_waitcnt lgkmcnt(2)')
    a(mf(Dr,fr+8,NMS,v(Dr,16))); a(mf(Di,fr+8,C,v(Di,16)))
    a('s_waitcnt lgkmcnt(1)')
    a(mf(Dr,fr+4,C+4,v(Dr,16))); a(mf(Di,fr+4,MS+4,v(Di,16)))
    a('s_waitcnt lgkmcnt(0)')
    a(mf(Dr,fr+12,NMS+4,v(Dr,16))); a(mf(Di,fr+12,C+4,v(Di,16)))
    a('s_barrier')
    for g in issue(): a(g)
    Z=D[3]
    for i in range(16): a(f'v_mul_f32 {v(Z+i)}, {v(Dr+i)}, {v(twc+i)}')
    for i in range(16): a(f'v_mul_f32 {v(Dr+i)}, {v(Dr+i)}, {v(tws+i)}')
    for i in range(16): a(f'v_fma_f32 {v(Z+i)}, -{v(Di+i)}, {v(tws+i)}, {v(Z+i)}')
    for i in range(16): a(f'v_fmac_f32 {v(Dr+i)}, {v(Di+i)}, {v(twc+i)}')
    for i in range(8): a(f'v_cvt_pk_bf16_f32 {v(fr+i)}, {v(Z+2*i)}, {v(Z+2*i+1)}')
    for i in range(8): a(f'v_cvt_pk_bf16_f32 {v(fr+8+i)}, {v(Dr+2*i)}, {v(Dr+2*i+1)}')
    a(mf(Y,fr,C,'0')); a(mf(Y,fr+4,C+4,v(Y,16))); a(mf(Y,fr+8,NMS,v(Y,16))); a(mf(Y,fr+12,NMS+4,v(Y,16)))
    w1,w2=gemm_w_addr(a,R,r,h,dq,S_HD,S_KSF)
    x=[R.get() for _ in range(4)]
    a(f'''s_lshl_b32 s8, s{S_KSF}, 11
    s_lshl_b32 s9, s{S_OWN}, 10
    s_add_u32 s8, s8, s9
    v_add_u32 {v(x[0])}, s8, {v(l16)}
    v_xor_b32 {v(x[1])}, 0x400, {v(x[0])}
    v_xor_b32 {v(x[2])}, 0x800, {v(x[0])}
    v_xor_b32 {v(x[3])}, 0x800, {v(x[1])}
    v_lshlrev_b32 {v(t)}, 6, {v(pin)}
    v_lshl_add_u32 {v(t)}, {v(h)}, 4, {v(t)}
    s_lshl_b32 s8, s{S_W}, 8
    s_add_u32 s8, s8, s{S_T1}
    s_lshl_b32 s8, s8, 12''')
    for i in range(8): a(f'v_cvt_pk_bf16_f32 {v(fr+i)}, {v(Y+2*i)}, {v(Y+2*i+1)}')
    a(f'''buffer_store_dwordx4 {v(fr,4)}, {v(t)}, {s(SO,4)}, s8 offen
    buffer_store_dwordx4 {v(fr+4,4)}, {v(t)}, {s(SO,4)}, s8 offen offset:32''')
    accO=D[0]; accT=D[1]
    sets=[]
    base=[twc, D[2]]
    for b in base: sets.append(dict(W1=b,W2=b+4,X=[b+8+4*i for i in range(4)]))
    ad=[R.get() for _ in range(6)]
    for rr in list(range(accO,accO+32))+list(range(sets[1]['W1'],sets[1]['W1']+24)): a(f'v_mov_b32 {v(rr)}, 0')
    a(f's_mov_b32 s{S_C}, 0\ns_mov_b32 s{S_SLOT}, 0')
    def mfmas(st):
        m=lambda acc,A,B: f'v_mfma_f32_32x32x16_bf16 {v(acc,16)}, {v(A,4)}, {v(B,4)}, {v(acc,16)}'
        return [m(accO,st['W1'],st['X'][0]), m(accT,st['W1'],st['X'][1]), m(accO,st['W2'],st['X'][2]), m(accT,st['W2'],st['X'][3])]
    def half(cur,prev,odd,wait,doissue,last=False):
        a(f's_waitcnt vmcnt({wait})\ns_barrier')
        M=mfmas(prev)
        rel=[w1,w2]+x
        adds=[f'v_add_u32 {v(ad[i])}, s{S_SLOT}, {v(rel[i])}' for i in range(6)]
        a(M[0])
        a('\n'.join(adds[:3]))
        a(f'''ds_read_b64_tr_b16 {v(cur['W1'],2)}, {v(ad[0])}
        ds_read_b64_tr_b16 {v(cur['W1']+2,2)}, {v(ad[0])} offset:1024
        ds_read_b128 {v(cur['X'][0],4)}, {v(ad[2])}''')
        a(M[1])
        a('\n'.join(adds[3:]))
        a(f'''ds_read_b128 {v(cur['X'][1],4)}, {v(ad[3])}
        ds_read_b64_tr_b16 {v(cur['W2'],2)}, {v(ad[1])}
        ds_read_b64_tr_b16 {v(cur['W2']+2,2)}, {v(ad[1])} offset:1024''')
        a(M[2])
        a(f'''ds_read_b128 {v(cur['X'][2],4)}, {v(ad[4])}
        ds_read_b128 {v(cur['X'][3],4)}, {v(ad[5])}''')
        if doissue:
            for g in issue(): a(g)
        a(M[3])
        a(f'''s_add_u32 s{S_SLOT}, s{S_SLOT}, {SLOT}
        s_cmp_eq_u32 s{S_SLOT}, {6*SLOT}
        s_cselect_b32 s{S_SLOT}, 0, s{S_SLOT}''')
        if odd and doissue: a(f's_add_u32 s{S_C}, s{S_C}, 2\ns_cmp_lt_u32 s{S_C}, 16')
        a('s_waitcnt lgkmcnt(0)')
    a.label(f'{L}_loop')
    half(sets[0],sets[1],False,12,True)
    half(sets[1],sets[0],True,12,True)
    a(f's_cbranch_scc1 {L}_loop')
    for m in mfmas(sets[1]): a(m)
    a('s_waitcnt vmcnt(0)\ns_barrier')
    e1=ad[0]; e2=ad[1]
    a(f'''s_lshl_b32 s8, s{S_W}, 12
    v_add_u32 {v(e1)}, s8, {v(l16)}
    v_xor_b32 {v(e2)}, 0x4000, {v(e1)}''')
    for i in range(4): a(f'ds_write_b128 {v(e1)}, {v(accT+4*i,4)} offset:{1024*i}')
    a('s_waitcnt lgkmcnt(0)\ns_barrier')
    for i in range(4): a(f'ds_read_b128 {v(accT+4*i,4)}, {v(e2)} offset:{1024*i}')
    a(f'''v_and_b32 {v(t)}, 31, v0
    v_lshlrev_b32 {v(t)}, 12, {v(t)}
    v_lshl_add_u32 {v(t)}, {v(h)}, 4, {v(t)}
    s_lshl_b32 s8, s{S_QB}, 1
    s_add_u32 s8, s8, s{S_OWN}
    s_lshl_b32 s8, s8, 17
    s_lshl_b32 s9, s{S_HG}, 8
    s_add_u32 s8, s8, s9
    s_lshl_b32 s9, s{S_HD}, 6
    s_add_u32 s8, s8, s9
    s_add_u32 s8, s8, 2048
    s_waitcnt lgkmcnt(0)''')
    for i in range(16): a(f'v_add_f32 {v(accO+i)}, {v(accO+i)}, {v(accT+i)}')
    for i in range(8): a(f'v_cvt_pk_bf16_f32 {v(accT+i)}, {v(accO+2*i)}, {v(accO+2*i+1)}')
    a(f'''buffer_store_dwordx4 {v(accT,4)}, {v(t)}, {s(SO,4)}, s8 offen
    buffer_store_dwordx4 {v(accT+4,4)}, {v(t)}, {s(SO,4)}, s8 offen offset:32''')
    a.label(f'{L}_end')
    a('s_endpgm')
    return a,R.n

def main(out):
    ks=[('qkv_kernel',k1,163840),('attn_kernel',k2,3*32768+64),('outp_kernel',k3,163840)]
    hdr=open('cdna_kernels/'+NAME+'.s.ref').read().split('; Override launch')[0]
    txt=hdr
    for n,f,lds in ks: txt+=f'; @launch kernel={n} grid=(256,1,1) block=(512,1,1) lds={lds}\n'
    txt+='.amdgcn_target "amdgcn-amd-amdhsa--gfx950"\n.text\n'
    desc=''
    for n,f,lds in ks:
        a,nv=f(); a.fix(name=n)
        txt+=f'.globl {n}\n.p2align 8\n.type {n},@function\n{n}:\n'+a.text()
        desc+=f'''.p2align 6
.amdhsa_kernel {n}
  .amdhsa_next_free_vgpr 256
  .amdhsa_next_free_sgpr 96
  .amdhsa_accum_offset 256
  .amdhsa_group_segment_fixed_size 0
  .amdhsa_kernarg_size 104
  .amdhsa_user_sgpr_count 2
  .amdhsa_user_sgpr_kernarg_segment_ptr 1
  .amdhsa_system_sgpr_workgroup_id_x 1
.end_amdhsa_kernel
'''
        print(n,'vgprs',nv,'instrs',len(a.ins))
    txt+='.section .rodata,"a"\n'+desc
    open(out,'w').write(txt)
if __name__=='__main__':
    main(sys.argv[1] if len(sys.argv)>1 else 'cdna_kernels/'+NAME+'.s')
```
